```python
import torch

def _softmax(x, axis=-1):
    return torch.softmax(x, dim=axis)
def _gelu(x):
    return torch.nn.functional.gelu(x, approximate="tanh")
def _silu(x):
    return torch.nn.functional.silu(x)
def _sigmoid(x):
    return torch.sigmoid(x)
def _layernorm(x, axis=-1, eps=1e-5):
    m = x.mean(dim=axis, keepdim=True)
    v = x.var(dim=axis, keepdim=True, unbiased=False)
    return (x - m) / torch.sqrt(v + eps)
def _scatter_add(tgt, idx, src, axis=0):
    return tgt.clone().index_add_(axis, idx, src)
def _segment_sum(src, seg, n):
    out = torch.zeros((n,) + src.shape[1:], dtype=src.dtype)
    return out.index_add_(0, seg, src)
def _pad(x, pw):
    flat = tuple(v for pair in reversed(pw) for v in pair)
    return torch.nn.functional.pad(x, flat)

kernel_name = 'standalone__weight_only_int_quip__sampling'

def setup_inputs():

    _w = (lambda a: (lambda t: t.to(torch.bfloat16) if t.is_floating_point() else t)(torch.as_tensor(a)))
    B, S, D, F = 16, 4, 1024, 3584
    G = 32 if 32 > 0 else D
    D = (D // G) * G
    ng = D // G
    bits = 3 if 3 > 0 else 4
    qmax = 1 << bits
    qw = torch.randint(0, qmax, (D, F)).to(torch.int32)
    U, _ = (lambda *_a, **_k: torch.linalg.qr(*[torch.as_tensor(_x).float() for _x in _a], **_k))((lambda *s: torch.randn(*s, dtype=torch.bfloat16) * 0.05)(D, D))
    V, _ = (lambda *_a, **_k: torch.linalg.qr(*[torch.as_tensor(_x).float() for _x in _a], **_k))((lambda *s: torch.randn(*s, dtype=torch.bfloat16) * 0.05)(F, F))
    return {
        "x": _w((lambda *s: torch.randn(*s, dtype=torch.bfloat16) * 0.05)(B, S, D)),
        "qw": _w(qw),
        "scales": _w(torch.abs((lambda *s: torch.randn(*s, dtype=torch.bfloat16) * 0.05)(ng, F)) * 0.02 + 0.005),
        "zeros": _w(torch.full((ng, F), qmax / 2.0, dtype=float)),
        "U": _w(U.to(float)),
        "V": _w(V.to(float)),
    }

def reference(x, qw, scales, zeros, U, V):
    B, S, D = x.shape
    ng, F = scales.shape
    G = D // ng
    s = (lambda x, n, axis: torch.repeat_interleave(x, n, dim=axis))(scales, G, axis=0)
    z = (lambda x, n, axis: torch.repeat_interleave(x, n, dim=axis))(zeros, G, axis=0)
    wq = ((lambda x, dt: x.to(dt))(qw, x.dtype) - z) * s
    xr = torch.einsum("bsd,de->bse", x, U)
    h  = torch.einsum("bse,ef->bsf", xr, wq)
    y  = torch.einsum("bsf,fg->bsg", h, V)
    return y
```

```python
HEADER = """; Kernarg layout for this problem (72 bytes, ptrs only, base s[0:1]):
"""

SZ_X = 64 * 1024 * 2
SZ_QW = 1024 * 3584 * 4
SZ_SC = 32 * 3584 * 2
SZ_U = 1024 * 1024 * 2
SZ_V = 3584 * 3584 * 2
SZ_OUT = 64 * 3584 * 2
SZ_WS = 268435456


class Asm:
    def __init__(self):
        self.lines = []
        self.uid = 0

    def __call__(self, s):
        for ln in s.strip("\n").split("\n"):
            ln = ln.strip()
            if not ln:
                continue
            if ln.endswith(":") or ln.startswith("."):
                self.lines.append(ln)
            else:
                self.lines.append("    " + ln)

    def c(self, s):
        self.lines.append("    ; " + s)

    def label(self, base):
        self.uid += 1
        return "%s_%d" % (base, self.uid)

    def text(self):
        return "\n".join(self.lines) + "\n"

    def srd(self, d, b, size, add=0):
        if add:
            self("s_add_u32 s%d, s%d, 0x%x" % (d, b, add))
            self("s_addc_u32 s%d, s%d, 0" % (d + 1, b + 1))
        else:
            self("s_mov_b32 s%d, s%d" % (d, b))
            self("s_mov_b32 s%d, s%d" % (d + 1, b + 1))
        self("s_mov_b32 s%d, 0x%x" % (d + 2, size))
        self("s_mov_b32 s%d, 0x00020000" % (d + 3))


def vr(a, n=1):
    return "v%d" % a if n == 1 else "v[%d:%d]" % (a, a + n - 1)


def ar(a, n=1):
    return "a%d" % a if n == 1 else "a[%d:%d]" % (a, a + n - 1)


def sr(a, n=1):
    return "s%d" % a if n == 1 else "s[%d:%d]" % (a, a + n - 1)


def kernel_begin(a, name):
    a(".globl %s" % name)
    a(".p2align 8")
    a(".type %s,@function" % name)
    a("%s:" % name)


def kernel_desc(name, vgpr, sgpr, accum):
    return """.p2align 6
.amdhsa_kernel %s
  .amdhsa_next_free_vgpr %d
  .amdhsa_next_free_sgpr %d
  .amdhsa_accum_offset %d
  .amdhsa_group_segment_fixed_size 0
  .amdhsa_kernarg_size 72
  .amdhsa_user_sgpr_count 2
  .amdhsa_user_sgpr_kernarg_segment_ptr 1
  .amdhsa_system_sgpr_workgroup_id_x 1
.end_amdhsa_kernel
""" % (name, vgpr, sgpr, accum)
```

```python
import sys
from asmgen import *

XR_OFF = 0
H_OFF = 0x20000

def prologue(a, nwg, done):
    a("s_cmp_ge_u32 s2, %d" % nwg)
    a("s_cbranch_scc1 %s" % done)
    a("s_load_dwordx16 s[16:31], s[0:1], 0")
    a("s_load_dwordx2 s[32:33], s[0:1], 64")
    a("v_and_b32 v1, 63, v0")
    a("v_lshrrev_b32 v2, 6, v0")
    a("v_and_b32 v3, 15, v1")
    a("v_readfirstlane_b32 s4, v2")
    a("v_lshrrev_b32 v4, 4, v1")

def pi_rows(a, dst, tmp, ld):
    a("v_lshrrev_b32 %s, 3, v1" % vr(tmp))
    a("v_and_b32 %s, 3, %s" % (vr(tmp), vr(tmp)))
    a("v_lshlrev_b32 %s, 3, %s" % (vr(dst), vr(tmp)))
    a("v_lshrrev_b32 %s, 5, v1" % vr(tmp))
    a("v_lshl_add_u32 %s, %s, 2, %s" % (vr(dst), vr(tmp), vr(dst)))
    a("v_bfe_u32 %s, v1, 1, 2" % vr(tmp))
    a("v_add_u32 %s, %s, %s" % (vr(dst), vr(dst), vr(tmp)))
    a("v_mul_u32_u24 %s, %d, %s" % (vr(dst), ld, vr(dst)))
    a("v_and_b32 %s, 1, v1" % vr(tmp))
    a("v_lshl_add_u32 %s, %s, 4, %s" % (vr(dst), vr(tmp), vr(dst)))

def frag_store_off(a, dst, tmp, s_nt, s_mt, s_t0, s_t1):
    a("s_lshr_b32 s%d, s%d, 1" % (s_t0, s_nt))
    a("s_lshl_b32 s%d, s%d, 2" % (s_t0, s_t0))
    a("s_add_u32 s%d, s%d, s%d" % (s_t0, s_t0, s_mt))
    a("s_lshl_b32 s%d, s%d, 10" % (s_t0, s_t0))
    a("s_and_b32 s%d, s%d, 1" % (s_t1, s_nt))
    a("s_lshl_b32 s%d, s%d, 9" % (s_t1, s_t1))
    a("s_add_u32 s%d, s%d, s%d" % (s_t0, s_t0, s_t1))
    a("v_lshrrev_b32 %s, 1, v4" % vr(tmp))
    a("v_lshlrev_b32 %s, 8, %s" % (vr(dst), vr(tmp)))
    a("v_lshl_add_u32 %s, v3, 4, %s" % (vr(dst), vr(dst)))
    a("v_and_b32 %s, 1, v4" % vr(tmp))
    a("v_lshl_add_u32 %s, %s, 3, %s" % (vr(dst), vr(tmp), vr(dst)))
    a("v_add_u32 %s, s%d, %s" % (vr(dst), s_t0, vr(dst)))

def k1(a):
    name = "s1_kernel"
    kernel_begin(a, name)
    done = "s1_done"
    prologue(a, 256, done)
    a("s_and_b32 s5, s2, 7")
    a("s_lshr_b32 s6, s2, 3")
    a("s_lshr_b32 s7, s6, 2")
    a("s_lshl_b32 s5, s5, 3")
    a("s_add_u32 s5, s5, s7")
    a("s_and_b32 s6, s6, 3")
    a("v_lshlrev_b32 v5, 11, v3")
    a("v_lshl_add_u32 v5, v4, 4, v5")
    pi_rows(a, 6, 7, 2048)
    a("s_lshl_b32 s8, s6, 15")
    a("s_lshl_b32 s9, s4, 9")
    a("s_add_u32 s8, s8, s9")
    a("s_lshl_b32 s9, s4, 19")
    a("s_lshl_b32 s10, s5, 5")
    a("s_add_u32 s9, s9, s10")
    a("s_lshl_b32 s10, s4, 13")
    a("s_waitcnt lgkmcnt(0)")
    a.srd(36, 16, SZ_X)
    a.srd(40, 24, SZ_U)
    a.srd(44, 32, 0x20000, XR_OFF)
    for i in range(8):
        a("s_add_u32 s11, s10, %d" % (i * 1024))
        a("s_mov_b32 m0, s11")
        a("s_add_u32 s12, s9, %d" % (i * 65536))
        a("buffer_load_dwordx4 v6, s[40:43], s12 offen lds")
    for i in range(8):
        a("buffer_load_dwordx4 %s, v5, s[36:39], s8 offen offset:%d" % (vr(16 + 4 * i, 4), i * 64))
    a("v_lshlrev_b32 v7, 3, v1")
    a("v_add_u32 v7, s10, v7")
    frag_store_off(a, 8, 9, 5, 6, 13, 14)
    a("v_lshlrev_b32 v9, 4, v0")
    a("v_lshlrev_b32 v10, 4, v1")
    a("s_waitcnt vmcnt(0)")
    for i in range(8):
        a("ds_read_b64_tr_b16 %s, v7 offset:%d" % (vr(48 + 4 * i, 2), i * 1024))
        a("ds_read_b64_tr_b16 %s, v7 offset:%d" % (vr(50 + 4 * i, 2), i * 1024 + 512))
    a("s_waitcnt lgkmcnt(0)")
    for i in range(8):
        a("v_mfma_f32_16x16x32_bf16 v[12:15], %s, %s, %s" % (vr(48 + 4 * i, 4), vr(16 + 4 * i, 4), "0" if i == 0 else "v[12:15]"))
    a("s_nop 7")
    a("ds_write_b128 v9, v[12:15] offset:32768")
    a("s_waitcnt lgkmcnt(0)")
    a("s_barrier")
    a("s_cmp_lg_u32 s4, 0")
    a("s_cbranch_scc1 %s" % done)
    for w in range(1, 4):
        a("ds_read_b128 %s, v10 offset:%d" % (vr(12 + 4 * w, 4), 32768 + w * 1024))
    a("s_waitcnt lgkmcnt(0)")
    for r in range(4):
        a("v_add_f32 v%d, v%d, v%d" % (12 + r, 12 + r, 16 + r))
        a("v_add_f32 v%d, v%d, v%d" % (20 + r, 20 + r, 24 + r))
    for r in range(4):
        a("v_add_f32 v%d, v%d, v%d" % (12 + r, 12 + r, 20 + r))
    a("v_cvt_pk_bf16_f32 v16, v12, v13")
    a("v_cvt_pk_bf16_f32 v17, v14, v15")
    a("buffer_store_dwordx2 v[16:17], v8, s[44:47], 0 offen")
    a("%s:" % done)
    a("s_endpgm")
    return kernel_desc(name, 80, 56, 80), "; @launch kernel=%s grid=(256,1,1) block=(256,1,1) lds=36864" % name

def nt_map28(a):
    a("s_and_b32 s5, s2, 7")
    a("s_lshr_b32 s6, s2, 3")
    a("s_mul_i32 s5, s5, 28")
    a("s_add_u32 s5, s5, s6")

def reduce4(a, acc, tmp, ldsoff):
    a("v_lshlrev_b32 v9, 4, v1")
    a("s_lshl_b32 s11, s4, 12")
    a("v_add_u32 v9, s11, v9")
    a("s_lshl_b32 s11, s4, 10")
    a("v_lshlrev_b32 v10, 4, v1")
    a("v_add_u32 v10, s11, v10")
    a("s_nop 7")
    for mt in range(4):
        a("ds_write_b128 v9, %s offset:%d" % (vr(acc + 4 * mt, 4), ldsoff + mt * 1024))
    a("s_waitcnt lgkmcnt(0)")
    a("s_barrier")
    for w in range(4):
        a("ds_read_b128 %s, v10 offset:%d" % (vr(tmp + 4 * w, 4), ldsoff + w * 4096))
    a("s_waitcnt lgkmcnt(0)")
    for r in range(4):
        a("v_add_f32 v%d, v%d, v%d" % (tmp + r, tmp + r, tmp + 4 + r))
        a("v_add_f32 v%d, v%d, v%d" % (tmp + 8 + r, tmp + 8 + r, tmp + 12 + r))
    for r in range(4):
        a("v_add_f32 v%d, v%d, v%d" % (tmp + r, tmp + r, tmp + 8 + r))
    a("v_cvt_pk_bf16_f32 v%d, v%d, v%d" % (tmp + 4, tmp, tmp + 1))
    a("v_cvt_pk_bf16_f32 v%d, v%d, v%d" % (tmp + 5, tmp + 2, tmp + 3))

def k2(a):
    name = "s2_kernel"
    kernel_begin(a, name)
    done = "s2_done"
    prologue(a, 224, done)
    nt_map28(a)
    Q, XR, SC, ZR, ACC = 16, 80, 208, 216, 224
    a("v_mul_u32_u24 v5, %d, v4" % (8 * 14336))
    a("v_lshl_add_u32 v5, v3, 2, v5")
    a("v_lshlrev_b32 v6, 1, v3")
    a("v_lshlrev_b32 v7, 4, v1")
    a("s_mul_i32 s8, s4, %d" % (256 * 14336))
    a("s_lshl_b32 s9, s5, 6")
    a("s_add_u32 s8, s8, s9")
    a("s_mul_i32 s9, s4, %d" % (8 * 7168))
    a("s_lshl_b32 s10, s5, 5")
    a("s_add_u32 s9, s9, s10")
    a("s_lshl_b32 s10, s4, 15")
    a("s_waitcnt lgkmcnt(0)")
    a.srd(36, 18, SZ_QW)
    a.srd(40, 20, SZ_SC)
    a.srd(44, 22, SZ_SC)
    a.srd(48, 32, 0x20000, XR_OFF)
    a.srd(52, 32, 0x70000, H_OFF)
    for kb in range(8):
        a("s_add_u32 s12, s9, %d" % (kb * 7168))
        a("buffer_load_ushort v%d, v6, s[40:43], s12 offen" % (SC + kb))
        a("buffer_load_ushort v%d, v6, s[44:47], s12 offen" % (ZR + kb))
    for kb in range(8):
        for i in range(8):
            a("s_add_u32 s12, s8, %d" % ((kb * 32 + i) * 14336))
            a("buffer_load_dword v%d, v5, s[36:39], s12 offen" % (Q + kb * 8 + i))
    for kb in range(8):
        a("s_add_u32 s12, s10, %d" % (kb * 4096))
        for mt in range(4):
            a("buffer_load_dwordx4 %s, v7, s[48:51], s12 offen offset:%d" % (vr(XR + kb * 16 + mt * 4, 4), mt * 1024))
    frag_store_off(a, 8, 9, 5, 4, 13, 14)
    a("s_waitcnt vmcnt(32)")
    for kb in range(8):
        a("v_lshlrev_b32 v%d, 16, v%d" % (SC + kb, SC + kb))
        a("v_lshlrev_b32 v%d, 16, v%d" % (ZR + kb, ZR + kb))
        a("v_mul_f32 v%d, v%d, v%d" % (ZR + kb, ZR + kb, SC + kb))
        for i in range(8):
            q = Q + kb * 8 + i
            a("v_cvt_f32_i32 v%d, v%d" % (q, q))
        for i in range(8):
            q = Q + kb * 8 + i
            a("v_fma_f32 v%d, v%d, v%d, -v%d" % (q, q, SC + kb, ZR + kb))
        for p in range(4):
            q = Q + kb * 8
            a("v_cvt_pk_bf16_f32 v%d, v%d, v%d" % (q + p, q + 2 * p, q + 2 * p + 1))
    a("s_waitcnt vmcnt(0)")
    for kb in range(8):
        for mt in range(4):
            acc = vr(ACC + 4 * mt, 4)
            a("v_mfma_f32_16x16x32_bf16 %s, %s, %s, %s" % (acc, vr(Q + kb * 8, 4), vr(XR + kb * 16 + mt * 4, 4), "0" if kb == 0 else acc))
    reduce4(a, ACC, 16, 0)
    a("buffer_store_dwordx2 v[20:21], v8, s[52:55], 0 offen")
    a("%s:" % done)
    a("s_endpgm")
    return kernel_desc(name, 240, 64, 240), "; @launch kernel=%s grid=(224,1,1) block=(256,1,1) lds=16384" % name

def k3(a):
    name = "s3_kernel"
    kernel_begin(a, name)
    done = "s3_done"
    prologue(a, 224, done)
    nt_map28(a)
    HB, WF, ACC = 16, 144, 176
    pi_rows(a, 6, 7, 7168)
    a("v_lshlrev_b32 v5, 4, v1")
    a("s_mul_i32 s9, s4, %d" % (28 * 32 * 7168))
    a("s_lshl_b32 s10, s5, 5")
    a("s_add_u32 s9, s9, s10")
    a("s_mul_i32 s10, s4, %d" % (28 * 1024))
    a("s_mul_i32 s8, s4, %d" % (28 * 4096))
    a("s_waitcnt lgkmcnt(0)")
    a.srd(36, 26, SZ_V)
    a.srd(40, 32, 0x70000, H_OFF)
    a.srd(44, 28, SZ_OUT)
    for i in range(28):
        a("s_add_u32 s11, s10, %d" % (i * 1024))
        a("s_mov_b32 m0, s11")
        a("s_add_u32 s12, s9, %d" % (i * 32 * 7168))
        a("buffer_load_dwordx4 v6, s[36:39], s12 offen lds")
    def hload(ch):
        buf = HB + (ch & 1) * 64
        for q in range(4):
            a("s_add_u32 s12, s8, %d" % ((ch * 4 + q) * 4096))
            for mt in range(4):
                a("buffer_load_dwordx4 %s, v5, s[40:43], s12 offen offset:%d" % (vr(buf + q * 16 + mt * 4, 4), mt * 1024))
    hload(0)
    hload(1)
    a("v_lshlrev_b32 v7, 3, v1")
    a("v_add_u32 v7, s10, v7")
    a("s_lshl_b32 s11, s4, 4")
    a("v_add_u32 v8, s11, v3")
    a("v_mul_u32_u24 v8, 7168, v8")
    a("v_lshl_add_u32 v8, v4, 3, v8")
    a("s_lshl_b32 s11, s5, 5")
    a("v_add_u32 v8, s11, v8")
    for ch in range(7):
        buf = HB + (ch & 1) * 64
        a("s_waitcnt vmcnt(%d)" % (16 if ch < 6 else 0))
        for q in range(4):
            i = ch * 4 + q
            a("ds_read_b64_tr_b16 %s, v7 offset:%d" % (vr(WF + 4 * q, 2), i * 1024))
            a("ds_read_b64_tr_b16 %s, v7 offset:%d" % (vr(WF + 4 * q + 2, 2), i * 1024 + 512))
        a("s_waitcnt lgkmcnt(0)")
        for q in range(4):
            for mt in range(4):
                acc = vr(ACC + 4 * mt, 4)
                a("v_mfma_f32_16x16x32_bf16 %s, %s, %s, %s" % (acc, vr(WF + 4 * q, 4), vr(buf + q * 16 + mt * 4, 4), "0" if (ch == 0 and q == 0) else acc))
        if ch + 2 < 7:
            hload(ch + 2)
    a("s_barrier")
    reduce4(a, ACC, 16, 0)
    a("buffer_store_dwordx2 v[20:21], v8, s[44:47], 0 offen")
    a("%s:" % done)
    a("s_endpgm")
    return kernel_desc(name, 192, 64, 192), "; @launch kernel=%s grid=(224,1,1) block=(256,1,1) lds=114688" % name

a = Asm()
descs, launches = [], []
for k in (k1, k2, k3):
    d, l = k(a)
    descs.append(d)
    launches.append(l)
out = HEADER + "\n".join(launches) + "\n" + '.amdgcn_target "amdgcn-amd-amdhsa--gfx950"\n.text\n' + a.text() + '.section .rodata,"a"\n' + "".join(descs)
open(sys.argv[1], "w").write(out)
```
